```python
import torch

def _softmax(x, axis=-1):
    return torch.softmax(x, dim=axis)
def _gelu(x):
    return torch.nn.functional.gelu(x, approximate="tanh")
def _silu(x):
    return torch.nn.functional.silu(x)
def _sigmoid(x):
    return torch.sigmoid(x)
def _layernorm(x, axis=-1, eps=1e-5):
    m = x.mean(dim=axis, keepdim=True)
    v = x.var(dim=axis, keepdim=True, unbiased=False)
    return (x - m) / torch.sqrt(v + eps)
def _scatter_add(tgt, idx, src, axis=0):
    return tgt.clone().index_add_(axis, idx, src)
def _segment_sum(src, seg, n):
    out = torch.zeros((n,) + src.shape[1:], dtype=src.dtype)
    return out.index_add_(0, seg, src)
def _pad(x, pw):
    flat = tuple(v for pair in reversed(pw) for v in pair)
    return torch.nn.functional.pad(x, flat)

kernel_name = 'standalone__groupnorm__sampling'

def setup_inputs():

    _w = (lambda a: (lambda t: t.to(torch.bfloat16) if t.is_floating_point() else t)(torch.as_tensor(a)))
    B = 32
    G = 32
    cpg = max(1, 512 // G)
    C = G * cpg
    H, W = 32, 16
    return {
        "x": _w(abs((lambda *s: torch.randn(*s, dtype=torch.bfloat16) * 0.05)(B, C, H, W))),
        "g": _w((lambda *s: torch.randn(*s, dtype=torch.bfloat16) * 0.05)(C) + 1.0),
        "b": _w((lambda *s: torch.randn(*s, dtype=torch.bfloat16) * 0.4)(C)),
    }

def reference(x, g, b):
    G = 32
    B, C, H, W = x.shape[0], x.shape[1], x.shape[2], x.shape[3]
    xr = x.reshape(B, G, C // G, H, W)
    mu = xr.mean(axis=(2, 3, 4), keepdims=True)
    var = ((xr - mu) ** 2).mean(axis=(2, 3, 4), keepdims=True)
    xn = (xr - mu) / torch.sqrt(var + 1e-5)
    xn = xn.reshape(B, C, H, W)
    return xn * g[None, :, None, None] + b[None, :, None, None]
```

```python
import sys, argparse

HEADER = """; Kernarg layout for this problem (48 bytes, ptrs only, base s[0:1]):
; @launch grid=({grid},1,1) block=({block},1,1) lds={lds}
.amdgcn_target "amdgcn-amd-amdhsa--gfx950"
.text
.globl standalone__groupnorm__sampling_kernel
.p2align 8
.type standalone__groupnorm__sampling_kernel,@function
standalone__groupnorm__sampling_kernel:
"""
FOOTER = """.section .rodata,"a"
.p2align 6
.amdhsa_kernel standalone__groupnorm__sampling_kernel
  .amdhsa_next_free_vgpr {vgpr}
  .amdhsa_next_free_sgpr {sgpr}
  .amdhsa_accum_offset {acc}
  .amdhsa_group_segment_fixed_size 0
  .amdhsa_kernarg_size 48
  .amdhsa_user_sgpr_count 2
  .amdhsa_user_sgpr_kernarg_segment_ptr 1
  .amdhsa_system_sgpr_workgroup_id_x 1
  .amdhsa_float_denorm_mode_32 3
.end_amdhsa_kernel
"""

def gen(P=4, ldflags="", stflags="", xcd=False, rnd=True, usedot=True, warm_out=False, stamp=False, dbg=False, noload=False, nostore=False, swarm=False, xp=0, st2="", st2mask=0):
    L = 16 // P
    o = []
    e = o.append
    RAW = 8
    D = RAW + 4 * L
    A1 = D + 8 * L
    A2 = A1 + 2
    T = A2 + 2
    ntmp = max(16, 2 * P)
    vg = T + ntmp
    if stamp:
        e(f"; stamps={1024*P}")
        e("    s_memrealtime s[80:81]")
        e("    s_load_dwordx2 s[88:89], s[0:1], 40")
        e("    s_mov_b32 s90, s2")
    if dbg:
        e("    s_memrealtime s[80:81]")
        e("    s_memtime s[92:93]")
        e("    s_load_dwordx2 s[88:89], s[0:1], 32")
    e("    s_load_dwordx8 s[4:11], s[0:1], 0")
    e("    s_cmp_ge_u32 s2, 1024")
    e("    s_cbranch_scc1 L_end")
    if xcd:
        e("    s_and_b32 s3, s2, 7")
        e("    s_lshr_b32 s2, s2, 3")
        e("    s_lshl_b32 s3, s3, 7")
        e("    s_or_b32 s2, s2, s3")
    if xp:
        e("    s_and_b32 s3, s2, 7")
        e(f"    s_lshl_b32 s3, s3, {xp}")
        e(f"    s_bfe_u32 s12, s2, {(xp << 16) | 3}")
        e("    s_or_b32 s3, s3, s12")
        e(f"    s_andn2_b32 s2, s2, {(1 << (xp + 3)) - 1}")
        e("    s_or_b32 s2, s2, s3")
    e("    v_lshlrev_b32 v1, 4, v0                    ; tid*16")
    e("    v_readfirstlane_b32 s12, v0                ; wave*64")
    e("    s_lshl_b32 s3, s2, 14")
    if P > 1 and L > 1:
        e("    v_and_b32 v2, 0x3c0, v0                    ; wave*64")
        e(f"    v_mul_u32_u24 v2, {16*(L-1)}, v2              ; wave*(L-1)*1024")
        e("    v_add3_u32 v1, v1, v2, s3")
    else:
        e("    v_add_u32 v1, s3, v1")
    if L > 4:
        e("    v_add_u32 v1, 0x1000, v1")
    if L > 8:
        e("    v_add_u32 v5, 0x2000, v1")
    def addr(i):
        if L <= 4: return "v1", i * 1024
        return ("v1" if i < 8 else "v5"), (i % 8) * 1024 - 4096
    e("    v_lshlrev_b32 v3, 3, v0")
    e("    s_and_b32 s13, s2, 31")
    e("    s_lshl_b32 s13, s13, 5")
    lg = {1: 0, 2: 1, 4: 2, 8: 3, 16: 4}[L]
    e(f"    s_lshr_b32 s12, s12, {5-lg}")
    e("    s_add_u32 s13, s13, s12")
    if L == 1:
        e("    s_and_b32 s26, s13, 2")
        e("    s_and_b32 s13, s13, 0xfffffffc")
    e("    s_mov_b32 s22, 0x00003f80")
    e("    s_mov_b32 s23, 0x3f800000")
    e("    s_waitcnt lgkmcnt(0)")
    for i in range(L):
        ar, off = addr(i)
        if not noload:
            e(f"    global_load_dwordx4 v[{RAW+4*i}:{RAW+4*i+3}], {ar}, s[4:5] offset:{off} {ldflags}")
    GS = 28
    BS = 36
    nd = max(1, L // 2)
    sfx = {1: "dword", 2: "dwordx2", 4: "dwordx4", 8: "dwordx8"}[nd]
    def sr(b): return f"s{b}" if nd == 1 else f"s[{b}:{b+nd-1}]"
    e("    s_load_dword s14, s[4:5], s3")
    e(f"    s_load_{sfx} {sr(GS)}, s[6:7], s13")
    e(f"    s_load_{sfx} {sr(BS)}, s[8:9], s13")
    if swarm:
        e("    s_load_dword s27, s[10:11], s3")
    if warm_out:
        e(f"    global_load_dword v{vg}, v1, s[10:11]")
        vg += 1
    e(f"    v_mov_b32 v{A1}, 0")
    e(f"    v_mov_b32 v{A1+1}, 0")
    e(f"    v_mov_b32 v{A2}, 0")
    e(f"    v_mov_b32 v{A2+1}, 0")
    e("    v_mov_b32 v4, 0")
    e("    s_waitcnt lgkmcnt(0)")
    e("    s_lshl_b32 s14, s14, 16")
    e("    s_xor_b32 s15, s14, 0x80000000             ; -K")
    e("    v_mov_b32 v2, s15")
    GF = 44; BF = 60
    if L == 1:
        e("    s_lshl_b32 s26, s26, 3                     ; 0 or 16")
        e(f"    s_lshr_b32 s{GF}, s{GS}, s26")
        e(f"    s_lshl_b32 s{GF}, s{GF}, 16")
        e(f"    s_lshr_b32 s{BF}, s{BS}, s26")
        e(f"    s_lshl_b32 s{BF}, s{BF}, 16")
    else:
        for c in range(L):
            for (src, dst) in ((GS, GF), (BS, BF)):
                if c % 2 == 0:
                    e(f"    s_lshl_b32 s{dst+c}, s{src+c//2}, 16")
                else:
                    e(f"    s_and_b32 s{dst+c}, s{src+c//2}, 0xffff0000")
    extra = 1 if warm_out else 0
    for i in range(L):
        e(f"    s_waitcnt vmcnt({L-1-i+extra})")
        if (stamp or dbg) and i == 0:
            e("    s_memrealtime s[82:83]")
        if (stamp or dbg) and i == L - 1:
            e("    s_memrealtime s[84:85]")
        for j in range(4):
            r = RAW + 4 * i + j
            d = D + 8 * i + 2 * j
            if usedot:
                e(f"    v_dot2_f32_bf16 v{d}, v{r}, s22, v2")
                e(f"    v_dot2_f32_bf16 v{d+1}, v{r}, s23, v2")
            else:
                e(f"    v_lshlrev_b32 v{d}, 16, v{r}")
                e(f"    v_and_b32 v{d+1}, 0xffff0000, v{r}")
        if not usedot:
            for j in range(4):
                d = D + 8 * i + 2 * j
                e(f"    v_pk_add_f32 v[{d}:{d+1}], v[{d}:{d+1}], v[2:3] op_sel_hi:[1,0]")
        for j in range(4):
            d = D + 8 * i + 2 * j
            e(f"    v_pk_add_f32 v[{A1}:{A1+1}], v[{A1}:{A1+1}], v[{d}:{d+1}]")
            e(f"    v_pk_fma_f32 v[{A2}:{A2+1}], v[{d}:{d+1}], v[{d}:{d+1}], v[{A2}:{A2+1}]")
    e(f"    v_add_f32 v6, v{A1}, v{A1+1}")
    e(f"    v_add_f32 v7, v{A2}, v{A2+1}")
    for dpp in ("row_shr:1 row_mask:0xf bank_mask:0xf", "row_shr:2 row_mask:0xf bank_mask:0xf",
                "row_shr:4 row_mask:0xf bank_mask:0xf", "row_shr:8 row_mask:0xf bank_mask:0xf",
                "row_bcast:15 row_mask:0xa bank_mask:0xf", "row_bcast:31 row_mask:0xc bank_mask:0xf"):
        e("    s_nop 0")
        e(f"    v_add_f32_dpp v6, v6, v6 {dpp}")
        e(f"    v_add_f32_dpp v7, v7, v7 {dpp}")
    if P > 1:
        e("    ds_write_b64 v3, v[6:7]")
        e("    s_waitcnt lgkmcnt(0)")
        e("    s_barrier")
        if P <= 4:
            for k in range(P // 2):
                e(f"    ds_read2_b64 v[{T+4*k}:{T+4*k+3}], v4 offset0:{128*k+63} offset1:{128*k+127}")
        else:
            for k in range(P):
                e(f"    ds_read_b64 v[{T+2*k}:{T+2*k+1}], v4 offset:{512*k+504}")
        e("    s_waitcnt lgkmcnt(0)")
        n = P
        while n > 1:
            h = n // 2
            for k in range(h):
                a = T + 2 * k; b = T + 2 * (k + h)
                e(f"    v_pk_add_f32 v[{a}:{a+1}], v[{a}:{a+1}], v[{b}:{b+1}]")
            n = h
        S1 = T; S2 = T + 1
    else:
        e("    s_nop 0")
        e("    v_readlane_b32 s24, v6, 63")
        e("    v_readlane_b32 s25, v7, 63")
        e("    s_nop 0")
        e(f"    v_mov_b32 v{T}, s24")
        e(f"    v_mov_b32 v{T+1}, s25")
        S1 = T; S2 = T + 1
    e("    s_mov_b32 s16, 0x39000000                  ; 1/8192")
    e(f"    v_pk_mul_f32 v[{S1}:{S2}], v[{S1}:{S2}], s[16:17] op_sel_hi:[1,0]   ; m1, m2")
    m1 = S1; m2 = S2; mu = T + 2; ee = T + 3; t = T + 4; var = T + 5
    e(f"    v_add_f32 v{mu}, s14, v{m1}                ; mu")
    if rnd:
        e(f"    v_cvt_pk_bf16_f32 v{mu}, v{mu}, v{mu}")
        e(f"    v_and_b32 v{mu}, 0xffff0000, v{mu}")
    e(f"    v_add_f32 v{ee}, v{mu}, v2                 ; e = mu - K")
    e(f"    v_fma_f32 v{t}, v{m1}, -2.0, v{ee}")
    e(f"    v_fma_f32 v{var}, v{ee}, v{t}, v{m2}       ; var")
    if rnd:
        e(f"    v_cvt_pk_bf16_f32 v{var}, v{var}, v{var}")
        e(f"    v_and_b32 v{var}, 0xffff0000, v{var}")
    e(f"    v_add_f32 v{var}, 0x3727c5ac, v{var}       ; + 1e-5")
    if rnd:
        e(f"    v_cvt_pk_bf16_f32 v{var}, v{var}, v{var}")
        e(f"    v_and_b32 v{var}, 0xffff0000, v{var}")
        e(f"    v_sqrt_f32 v{var}, v{var}")
        e("    s_nop 0")
        e(f"    v_cvt_pk_bf16_f32 v{var}, v{var}, v{var}")
        e(f"    v_and_b32 v{var}, 0xffff0000, v{var}")
        e(f"    v_rcp_f32 v{var}, v{var}")
    else:
        e(f"    v_rsq_f32 v{var}, v{var}")
    e("    s_nop 0")
    for i in range(L):
        sc = T + 6 + 2 * (i % 2); sh = sc + 1
        sc = T + 6 + 4 * (i % 2); sh = sc + 2
        e(f"    v_mul_f32 v{sc}, s{GF+i}, v{var}")
        e(f"    v_fma_f32 v{sh}, -v{ee}, v{sc}, s{BF+i}")
        for j in range(4):
            d = D + 8 * i + 2 * j
            e(f"    v_pk_fma_f32 v[{d}:{d+1}], v[{d}:{d+1}], v[{sc}:{sc+1}], v[{sh}:{sh+1}] op_sel_hi:[1,0,0]")
        for j in range(4):
            d = D + 8 * i + 2 * j
            e(f"    v_cvt_pk_bf16_f32 v{RAW+4*i+j}, v{d}, v{d+1}")
        ar, off = addr(i)
        if not nostore:
            e(f"    global_store_dwordx4 {ar}, v[{RAW+4*i}:{RAW+4*i+3}], s[10:11] offset:{off} {st2 if (st2mask >> i) & 1 else stflags}")
    if stamp:
        e("    s_waitcnt vmcnt(0)")
        e("    s_memrealtime s[86:87]")
        e("    v_readfirstlane_b32 s91, v0")
        e(f"    s_mul_i32 s90, s90, {P*32}")
        e("    s_lshr_b32 s91, s91, 1")
        e("    s_add_u32 s90, s90, s91")
        e("    v_mov_b32 v1, s90")
        e("    s_waitcnt lgkmcnt(0)")
        e("    s_getreg_b32 s83, hwreg(HW_REG_HW_ID)")
        e("    s_getreg_b32 s85, hwreg(HW_REG_XCC_ID)")
        for k in range(8):
            e(f"    v_mov_b32 v{RAW+k}, s{80+k}")
        e("    s_mov_b64 exec, 1")
        e(f"    global_store_dwordx4 v1, v[{RAW}:{RAW+3}], s[88:89]")
        e(f"    global_store_dwordx4 v1, v[{RAW+4}:{RAW+7}], s[88:89] offset:16")
    if dbg:
        e("    s_waitcnt vmcnt(0)")
        e("    s_memrealtime s[86:87]")
        e("    s_memtime s[94:95]")
        e("    s_waitcnt lgkmcnt(0)")
        e("    s_mov_b64 exec, 1")
        e("    v_mov_b32 v1, 0")
        for k in range(4):
            e(f"    v_mov_b32 v{RAW+k}, s{80+2*k}")
            e(f"    v_not_b32 v{RAW+4+k}, s{80+2*k}")
        e("    s_sub_u32 s94, s94, s92")
        e("    s_sub_u32 s86, s86, s80")
        e(f"    v_mov_b32 v{RAW+8}, s94")
        e(f"    v_mov_b32 v{RAW+9}, s86")
        for k in range(10):
            e(f"    global_atomic_umax v1, v{RAW+k}, s[88:89] offset:{4*k}")
    e("L_end:")
    e("    s_endpgm")
    acc = (vg + 3) // 4 * 4
    lds = 512 * P if P > 1 else 0
    return HEADER.format(grid=1024, block=64 * P, lds=lds) + "\n".join(o) + "\n" + FOOTER.format(vgpr=vg, sgpr=96 if (stamp or dbg) else 80, acc=acc)

if __name__ == "__main__":
    ap = argparse.ArgumentParser()
    ap.add_argument("-P", type=int, default=4)
    ap.add_argument("--ld", default="")
    ap.add_argument("--st", default="")
    ap.add_argument("--xcd", action="store_true")
    ap.add_argument("--nornd", action="store_true")
    ap.add_argument("--nodot", action="store_true")
    ap.add_argument("--warm", action="store_true")
    ap.add_argument("--stamp", action="store_true")
    ap.add_argument("--dbg", action="store_true")
    ap.add_argument("--noload", action="store_true")
    ap.add_argument("--nostore", action="store_true")
    ap.add_argument("--swarm", action="store_true")
    ap.add_argument("--xp", type=int, default=0)
    ap.add_argument("--st2", default="")
    ap.add_argument("--st2mask", type=lambda v: int(v, 0), default=0)
    ap.add_argument("-o", default="/dev/stdout")
    a = ap.parse_args()
    open(a.o, "w").write(gen(a.P, a.ld, a.st, a.xcd, not a.nornd, not a.nodot, a.warm, a.stamp, a.dbg, a.noload, a.nostore, a.swarm, a.xp, a.st2, a.st2mask))
```

```python
import sys, argparse
from gen_a import HEADER, FOOTER

def gen(P=4, NG=2, D=1, ldflags="", stflags="nt", stamp=False, ldspad=0, early=True, prio=False):
    L = 16 // P
    GRID = 1024 // NG
    STRIDE = GRID * 16384
    o = []; e = o.append
    RAW = 8
    OUT = RAW + 4 * L * D
    Dv = OUT + 4 * L
    A1 = Dv + 8 * L; A2 = A1 + 2
    T = A2 + 2
    ntmp = max(16, 2 * P)
    vg = T + ntmp
    q = []
    def wait_for(tag):
        idx = max(i for i, t in enumerate(q) if t == tag)
        n = len(q) - 1 - idx
        e(f"    s_waitcnt vmcnt({n})")
        del q[:idx + 1]
    if stamp:
        e(f"; stamps={GRID*P}")
        e("    s_memrealtime s[80:81]")
        e("    s_load_dwordx2 s[88:89], s[0:1], 40")
        e("    s_mov_b32 s90, s2")
    e("    s_load_dwordx8 s[4:11], s[0:1], 0")
    e(f"    s_cmp_ge_u32 s2, {GRID}")
    e("    s_cbranch_scc1 L_end")
    e("    v_lshlrev_b32 v1, 4, v0                    ; tid*16")
    e("    v_readfirstlane_b32 s12, v0                ; wave*64")
    e("    s_lshl_b32 s3, s2, 14")
    if P > 1 and L > 1:
        e("    v_and_b32 v2, 0x3c0, v0                    ; wave*64")
        e(f"    v_mul_u32_u24 v2, {16*(L-1)}, v2              ; wave*(L-1)*1024")
        e("    v_add3_u32 v1, v1, v2, s3")
    else:
        e("    v_add_u32 v1, s3, v1")
    if L > 4:
        e("    v_add_u32 v1, 0x1000, v1")
    if L > 8:
        e("    v_add_u32 v5, 0x2000, v1")
    def addr(i):
        if L <= 4: return "v1", i * 1024
        return ("v1" if i < 8 else "v5"), (i % 8) * 1024 - 4096
    e("    v_lshlrev_b32 v3, 3, v0")
    e("    s_and_b32 s13, s2, 31")
    e("    s_lshl_b32 s13, s13, 5")
    lg = {1: 0, 2: 1, 4: 2, 8: 3, 16: 4}[L]
    e(f"    s_lshr_b32 s12, s12, {5-lg}")
    e("    s_add_u32 s13, s13, s12")
    if L == 1:
        e("    s_and_b32 s26, s13, 2")
        e("    s_and_b32 s13, s13, 0xfffffffc")
    e("    s_mov_b32 s22, 0x00003f80")
    e("    s_mov_b32 s23, 0x3f800000")
    e("    s_waitcnt lgkmcnt(0)")
    XB = 64; OB = 72
    def xb(r): return "s[4:5]" if r == 0 else f"s[{XB+2*r}:{XB+2*r+1}]"
    def ob(r): return "s[10:11]" if r == 0 else f"s[{OB+2*r}:{OB+2*r+1}]"
    def load(r, i):
        ar, off = addr(i)
        b = RAW + 4 * L * (r % D) + 4 * i
        e(f"    global_load_dwordx4 v[{b}:{b+3}], {ar}, {xb(r)} offset:{off} {ldflags}")
        q.append(("ld", r, i))
    for i in range(L): load(0, i)
    for r in range(1, NG):
        e(f"    s_add_u32 s{XB+2*r}, s4, {r*STRIDE}")
        e(f"    s_addc_u32 s{XB+2*r+1}, s5, 0")
    for r in range(1, D):
        for i in range(L): load(r, i)
    GS = 28; BS = 36; KS = 16
    nd = max(1, L // 2)
    sfx = {1: "dword", 2: "dwordx2", 4: "dwordx4", 8: "dwordx8"}[nd]
    def sr(b): return f"s{b}" if nd == 1 else f"s[{b}:{b+nd-1}]"
    for r in range(NG):
        e(f"    s_load_dword s{KS+r}, {xb(r)}, s3")
    e(f"    s_load_{sfx} {sr(GS)}, s[6:7], s13")
    e(f"    s_load_{sfx} {sr(BS)}, s[8:9], s13")
    for r in range(1, NG):
        e(f"    s_add_u32 s{OB+2*r}, s10, {r*STRIDE}")
        e(f"    s_addc_u32 s{OB+2*r+1}, s11, 0")
    e("    v_mov_b32 v4, 0")
    e("    s_mov_b32 s24, 0x39000000                  ; 1/8192")
    e("    s_waitcnt lgkmcnt(0)")
    GF = 44; BF = 54 if L <= 8 else None
    assert L <= 8
    if L == 1:
        e("    s_lshl_b32 s26, s26, 3                     ; 0 or 16")
        e(f"    s_lshr_b32 s{GF}, s{GS}, s26")
        e(f"    s_lshl_b32 s{GF}, s{GF}, 16")
        e(f"    s_lshr_b32 s{BF}, s{BS}, s26")
        e(f"    s_lshl_b32 s{BF}, s{BF}, 16")
    else:
        for c in range(L):
            for (src, dst) in ((GS, GF), (BS, BF)):
                if c % 2 == 0:
                    e(f"    s_lshl_b32 s{dst+c}, s{src+c//2}, 16")
                else:
                    e(f"    s_and_b32 s{dst+c}, s{src+c//2}, 0xffff0000")
    for r in range(NG):
        e(f"    ; ---------------- round {r}")
        e(f"    s_lshl_b32 s14, s{KS+r}, 16")
        e("    s_xor_b32 s15, s14, 0x80000000             ; -K")
        e("    v_mov_b32 v2, s15")
        R = RAW + 4 * L * (r % D)
        for i in range(L):
            wait_for(("ld", r, i))
            if stamp and r == 0 and i == 0:
                e("    s_memrealtime s[82:83]")
            if stamp and r == NG - 1 and i == L - 1:
                e("    s_memrealtime s[84:85]")
            for j in range(4):
                rr = R + 4 * i + j; d = Dv + 8 * i + 2 * j
                e(f"    v_dot2_f32_bf16 v{d}, v{rr}, s22, v2")
                e(f"    v_dot2_f32_bf16 v{d+1}, v{rr}, s23, v2")
            if early and r + D < NG:
                load(r + D, i)
            for j in range(4):
                d = Dv + 8 * i + 2 * j
                if i == 0 and j == 0:
                    e(f"    v_pk_mul_f32 v[{A2}:{A2+1}], v[{d}:{d+1}], v[{d}:{d+1}]")
                elif i == 0 and j == 1:
                    e(f"    v_pk_add_f32 v[{A1}:{A1+1}], v[{d-2}:{d-1}], v[{d}:{d+1}]")
                    e(f"    v_pk_fma_f32 v[{A2}:{A2+1}], v[{d}:{d+1}], v[{d}:{d+1}], v[{A2}:{A2+1}]")
                else:
                    e(f"    v_pk_add_f32 v[{A1}:{A1+1}], v[{A1}:{A1+1}], v[{d}:{d+1}]")
                    e(f"    v_pk_fma_f32 v[{A2}:{A2+1}], v[{d}:{d+1}], v[{d}:{d+1}], v[{A2}:{A2+1}]")
        if not early and r + D < NG:
            for i in range(L): load(r + D, i)
        e(f"    v_add_f32 v6, v{A1}, v{A1+1}")
        e(f"    v_add_f32 v7, v{A2}, v{A2+1}")
        for dpp in ("row_shr:1 row_mask:0xf bank_mask:0xf", "row_shr:2 row_mask:0xf bank_mask:0xf",
                    "row_shr:4 row_mask:0xf bank_mask:0xf", "row_shr:8 row_mask:0xf bank_mask:0xf",
                    "row_bcast:15 row_mask:0xa bank_mask:0xf", "row_bcast:31 row_mask:0xc bank_mask:0xf"):
            e("    s_nop 0")
            e(f"    v_add_f32_dpp v6, v6, v6 {dpp}")
            e(f"    v_add_f32_dpp v7, v7, v7 {dpp}")
        lbase = r * P * 512
        e(f"    ds_write_b64 v3, v[6:7] offset:{lbase}")
        e("    s_waitcnt lgkmcnt(0)")
        e("    s_barrier")
        for k in range(P):
            e(f"    ds_read_b64 v[{T+2*k}:{T+2*k+1}], v4 offset:{lbase+512*k+504}")
        e("    s_waitcnt lgkmcnt(0)")
        n = P
        while n > 1:
            h = n // 2
            for k in range(h):
                a = T + 2 * k; b = T + 2 * (k + h)
                e(f"    v_pk_add_f32 v[{a}:{a+1}], v[{a}:{a+1}], v[{b}:{b+1}]")
            n = h
        m1 = T; m2 = T + 1; mu = T + 2; ee = T + 3; t = T + 4; var = T + 5
        e(f"    v_pk_mul_f32 v[{m1}:{m2}], v[{m1}:{m2}], s[24:25] op_sel_hi:[1,0]   ; m1, m2")
        e(f"    v_add_f32 v{mu}, s14, v{m1}                ; mu")
        e(f"    v_cvt_pk_bf16_f32 v{mu}, v{mu}, v{mu}")
        e(f"    v_and_b32 v{mu}, 0xffff0000, v{mu}")
        e(f"    v_add_f32 v{ee}, v{mu}, v2                 ; e = mu - K")
        e(f"    v_fma_f32 v{t}, v{m1}, -2.0, v{ee}")
        e(f"    v_fma_f32 v{var}, v{ee}, v{t}, v{m2}       ; var")
        e(f"    v_cvt_pk_bf16_f32 v{var}, v{var}, v{var}")
        e(f"    v_and_b32 v{var}, 0xffff0000, v{var}")
        e(f"    v_add_f32 v{var}, 0x3727c5ac, v{var}       ; + 1e-5")
        e(f"    v_cvt_pk_bf16_f32 v{var}, v{var}, v{var}")
        e(f"    v_and_b32 v{var}, 0xffff0000, v{var}")
        e(f"    v_sqrt_f32 v{var}, v{var}")
        e("    s_nop 0")
        e(f"    v_cvt_pk_bf16_f32 v{var}, v{var}, v{var}")
        e(f"    v_and_b32 v{var}, 0xffff0000, v{var}")
        e(f"    v_rcp_f32 v{var}, v{var}")
        e("    s_nop 0")
        for i in range(L):
            sc = T + 6 + 4 * (i % 2); sh = sc + 2
            e(f"    v_mul_f32 v{sc}, s{GF+i}, v{var}")
            e(f"    v_fma_f32 v{sh}, -v{ee}, v{sc}, s{BF+i}")
            for j in range(4):
                d = Dv + 8 * i + 2 * j
                e(f"    v_pk_fma_f32 v[{d}:{d+1}], v[{d}:{d+1}], v[{sc}:{sc+1}], v[{sh}:{sh+1}] op_sel_hi:[1,0,0]")
            for j in range(4):
                d = Dv + 8 * i + 2 * j
                e(f"    v_cvt_pk_bf16_f32 v{OUT+4*i+j}, v{d}, v{d+1}")
            ar, off = addr(i)
            e(f"    global_store_dwordx4 {ar}, v[{OUT+4*i}:{OUT+4*i+3}], {ob(r)} offset:{off} {stflags}")
            q.append(("st", r, i))
    if stamp:
        e("    s_waitcnt vmcnt(0)")
        e("    s_memrealtime s[86:87]")
        e("    v_readfirstlane_b32 s91, v0")
        e(f"    s_mul_i32 s90, s90, {P*32}")
        e("    s_lshr_b32 s91, s91, 1")
        e("    s_add_u32 s90, s90, s91")
        e("    v_mov_b32 v1, s90")
        e("    s_waitcnt lgkmcnt(0)")
        e("    s_getreg_b32 s83, hwreg(HW_REG_HW_ID)")
        e("    s_getreg_b32 s85, hwreg(HW_REG_XCC_ID)")
        for k in range(8):
            e(f"    v_mov_b32 v{RAW+k}, s{80+k}")
        e("    s_mov_b64 exec, 1")
        e(f"    global_store_dwordx4 v1, v[{RAW}:{RAW+3}], s[88:89]")
        e(f"    global_store_dwordx4 v1, v[{RAW+4}:{RAW+7}], s[88:89] offset:16")
    e("L_end:")
    e("    s_endpgm")
    acc = (vg + 3) // 4 * 4
    lds = max(512 * P * NG, ldspad)
    return HEADER.format(grid=GRID, block=64 * P, lds=lds) + "\n".join(o) + "\n" + FOOTER.format(vgpr=vg, sgpr=96 if stamp else 80, acc=acc)

if __name__ == "__main__":
    ap = argparse.ArgumentParser()
    ap.add_argument("-P", type=int, default=4)
    ap.add_argument("--ng", type=int, default=2)
    ap.add_argument("-D", type=int, default=1)
    ap.add_argument("--ld", default="nt")
    ap.add_argument("--st", default="nt")
    ap.add_argument("--stamp", action="store_true")
    ap.add_argument("--late", action="store_true")
    ap.add_argument("--ldspad", type=int, default=0)
    ap.add_argument("-o", default="/dev/stdout")
    a = ap.parse_args()
    open(a.o, "w").write(gen(a.P, a.ng, a.D, a.ld, a.st, a.stamp, a.ldspad, not a.late))
```

```python
import sys, argparse
from gen_a import HEADER, FOOTER

def gen(P=4, ldflags="nt", stflags="nt", stamp=False, noload=False, nostore=False, gb="first", prio=0, vgb=False):
    L = 16 // P
    n = 512 * L
    o = []
    e = o.append
    RAW = 8
    D = RAW + 4 * L
    A1 = D + 8 * L
    A2 = A1 + 2
    T = A2 + 2
    ntmp = max(16, 2 * P + 8)
    vg = T + ntmp
    if stamp:
        e(f"; stamps={1024*P}")
        e("    s_memrealtime s[80:81]")
        e("    s_load_dwordx2 s[88:89], s[0:1], 40")
        e("    s_mov_b32 s90, s2")
    e("    s_load_dwordx8 s[4:11], s[0:1], 0")
    e("    s_cmp_ge_u32 s2, 1024")
    e("    s_cbranch_scc1 L_end")
    e("    v_lshlrev_b32 v1, 4, v0                    ; tid*16")
    e("    v_readfirstlane_b32 s12, v0                ; wave*64")
    e("    s_lshl_b32 s3, s2, 14")
    if P > 1 and L > 1:
        e("    v_and_b32 v2, 0x3c0, v0                    ; wave*64")
        e(f"    v_mul_u32_u24 v2, {16*(L-1)}, v2              ; wave*(L-1)*1024")
        e("    v_add3_u32 v1, v1, v2, s3                  ; byte offset of this lane's first 16 B")
    else:
        e("    v_add_u32 v1, s3, v1")
    if L > 4:
        e("    v_add_u32 v1, 0x1000, v1")
    if L > 8:
        e("    v_add_u32 v7, 0x2000, v1")
    def addr(i):
        if L <= 4: return "v1", i * 1024
        return ("v1" if i < 8 else "v7"), (i % 8) * 1024 - 4096
    e("    s_and_b32 s13, s2, 31")
    e("    s_lshl_b32 s13, s13, 5")
    lg = {1: 0, 2: 1, 4: 2, 8: 3, 16: 4}[L]
    e(f"    s_lshr_b32 s12, s12, {5-lg}")
    e("    s_add_u32 s13, s13, s12")
    if L == 1:
        e("    s_and_b32 s26, s13, 2")
        e("    s_and_b32 s13, s13, 0xfffffffc")
    GS = 28; BS = 36
    nd = max(1, L // 2)
    sfx = {1: "dword", 2: "dwordx2", 4: "dwordx4", 8: "dwordx8"}[nd]
    def sr(b): return f"s{b}" if nd == 1 else f"s[{b}:{b+nd-1}]"
    def gbload():
        e(f"    s_load_{sfx} {sr(GS)}, s[6:7], s13")
        e(f"    s_load_{sfx} {sr(BS)}, s[8:9], s13")
    e("    s_waitcnt lgkmcnt(0)")
    if gb == "first": gbload()
    for i in range(L):
        ar, off = addr(i)
        if not noload:
            e(f"    global_load_dwordx4 v[{RAW+4*i}:{RAW+4*i+3}], {ar}, s[4:5] offset:{off} {ldflags}")
        if gb == "second" and i == 0: gbload()
    if gb == "last": gbload()
    e("    v_mov_b32 v2, 0x00003f80")
    e("    v_mov_b32 v3, 1.0")
    e("    v_lshlrev_b32 v4, 2, v0")
    e("    v_mov_b32 v5, 252")
    e(f"    s_mov_b32 s16, {hex(0x3f800000 - ((n.bit_length()-1) << 23))}                  ; 1/{n}")
    for i in range(L):
        e(f"    s_waitcnt vmcnt({L-1-i})")
        if stamp and i == 0:
            e("    s_memrealtime s[82:83]")
        if stamp and i == L - 1:
            e("    s_memrealtime s[84:85]")
        if i == 0:
            e(f"    v_readfirstlane_b32 s14, v{RAW}")
            e("    s_lshl_b32 s14, s14, 16                    ; K = this wave's first element as fp32")
            e("    s_xor_b32 s15, s14, 0x80000000             ; -K")
        for j in range(4):
            r = RAW + 4 * i + j
            d = D + 8 * i + 2 * j
            e(f"    v_dot2_f32_bf16 v{d}, v{r}, v2, s15")
            e(f"    v_dot2_f32_bf16 v{d+1}, v{r}, v3, s15")
        for j in range(4):
            d = D + 8 * i + 2 * j
            if i == 0 and j == 0:
                e(f"    v_pk_mul_f32 v[{A2}:{A2+1}], v[{d}:{d+1}], v[{d}:{d+1}]")
            elif i == 0 and j == 1:
                e(f"    v_pk_add_f32 v[{A1}:{A1+1}], v[{d-2}:{d-1}], v[{d}:{d+1}]")
                e(f"    v_pk_fma_f32 v[{A2}:{A2+1}], v[{d}:{d+1}], v[{d}:{d+1}], v[{A2}:{A2+1}]")
            else:
                e(f"    v_pk_add_f32 v[{A1}:{A1+1}], v[{A1}:{A1+1}], v[{d}:{d+1}]")
                e(f"    v_pk_fma_f32 v[{A2}:{A2+1}], v[{d}:{d+1}], v[{d}:{d+1}], v[{A2}:{A2+1}]")
    SA = T; SB = T + 1
    e(f"    v_add_f32 v{SA}, v{A1}, v{A1+1}")
    e(f"    v_add_f32 v{SB}, v{A2}, v{A2+1}")
    for dpp in ("row_shr:1 row_mask:0xf bank_mask:0xf", "row_shr:2 row_mask:0xf bank_mask:0xf",
                "row_shr:4 row_mask:0xf bank_mask:0xf", "row_shr:8 row_mask:0xf bank_mask:0xf",
                "row_bcast:15 row_mask:0xa bank_mask:0xf", "row_bcast:31 row_mask:0xc bank_mask:0xf"):
        e("    s_nop 0")
        e(f"    v_add_f32_dpp v{SA}, v{SA}, v{SA} {dpp}")
        e(f"    v_add_f32_dpp v{SB}, v{SB}, v{SB} {dpp}")
    e(f"    v_mul_f32 v{T+2}, s16, v{SA}                 ; S1/n")
    e(f"    v_fma_f32 v{SB}, -v{T+2}, v{SA}, v{SB}         ; M2 = S2 - S1*S1/n")
    e(f"    v_add_f32 v{SA}, s14, v{T+2}")
    GF = 44; BF = 60
    def unpack():
        if L == 1:
            e("    s_lshl_b32 s26, s26, 3                     ; 0 or 16")
            e(f"    s_lshr_b32 s{GF}, s{GS}, s26")
            e(f"    s_lshl_b32 s{GF}, s{GF}, 16")
            e(f"    s_lshr_b32 s{BF}, s{BS}, s26")
            e(f"    s_lshl_b32 s{BF}, s{BF}, 16")
        else:
            for c in range(L):
                for (src, dst) in ((GS, GF), (BS, BF)):
                    if c % 2 == 0:
                        e(f"    s_lshl_b32 s{dst+c}, s{src+c//2}, 16")
                    else:
                        e(f"    s_and_b32 s{dst+c}, s{src+c//2}, 0xffff0000")
    assert P > 1
    e(f"    ds_write2st64_b32 v4, v{SA}, v{SB} offset0:0 offset1:{P}")
    e("    s_waitcnt lgkmcnt(0)")
    e("    s_barrier")
    M = T + 2
    Q = M + P
    for k in range(P // 2):
        e(f"    ds_read2st64_b32 v[{M+2*k}:{M+2*k+1}], v5 offset0:{2*k} offset1:{2*k+1}")
    for k in range(P // 2):
        e(f"    ds_read2st64_b32 v[{Q+2*k}:{Q+2*k+1}], v5 offset0:{P+2*k} offset1:{P+2*k+1}")
    unpack()
    e(f"    s_mov_b32 s17, {hex(0x3f800000 - ((P.bit_length()-1) << 23))}                  ; 1/{P}")
    e("    s_mov_b32 s18, 0x39000000                  ; 1/8192")
    e(f"    s_waitcnt lgkmcnt({P//2})")
    X = Q + P
    if P == 2:
        e(f"    v_add_f32 v{SA}, v{M}, v{M+1}")
    else:
        e(f"    v_pk_add_f32 v[{X}:{X+1}], v[{M}:{M+1}], v[{M+2}:{M+3}]")
        for k in range(2, P // 2):
            e(f"    v_pk_add_f32 v[{X}:{X+1}], v[{X}:{X+1}], v[{M+2*k}:{M+2*k+1}]")
        e(f"    v_add_f32 v{SA}, v{X}, v{X+1}")
    mu = SA; ee = SB
    e(f"    v_mul_f32 v{mu}, s17, v{mu}                ; mu")
    e(f"    v_cvt_pk_bf16_f32 v{mu}, v{mu}, v{mu}")
    e(f"    v_and_b32 v{mu}, 0xffff0000, v{mu}")
    e("    s_waitcnt lgkmcnt(0)")
    for k in range(P // 2):
        e(f"    v_pk_add_f32 v[{M+2*k}:{M+2*k+1}], v[{M+2*k}:{M+2*k+1}], v[{mu}:{mu+1}] op_sel_hi:[1,0] neg_lo:[0,1] neg_hi:[0,1]")
    for k in range(1, P // 2):
        e(f"    v_pk_add_f32 v[{Q}:{Q+1}], v[{Q}:{Q+1}], v[{Q+2*k}:{Q+2*k+1}]")
    e(f"    v_pk_mul_f32 v[{Q}:{Q+1}], v[{Q}:{Q+1}], s[16:17] op_sel_hi:[1,0]   ; M2/n")
    for k in range(P // 2):
        e(f"    v_pk_fma_f32 v[{Q}:{Q+1}], v[{M+2*k}:{M+2*k+1}], v[{M+2*k}:{M+2*k+1}], v[{Q}:{Q+1}]")
    var = Q
    e(f"    v_add_f32 v{ee}, s15, v{mu}                 ; e = mu - K")
    e(f"    v_add_f32 v{var}, v{Q}, v{Q+1}")
    e(f"    v_mul_f32 v{var}, s17, v{var}              ; var")
    e(f"    v_cvt_pk_bf16_f32 v{var}, v{var}, v{var}")
    e(f"    v_and_b32 v{var}, 0xffff0000, v{var}")
    e(f"    v_add_f32 v{var}, 0x3727c5ac, v{var}       ; + 1e-5")
    e(f"    v_cvt_pk_bf16_f32 v{var}, v{var}, v{var}")
    e(f"    v_and_b32 v{var}, 0xffff0000, v{var}")
    e(f"    v_sqrt_f32 v{var}, v{var}")
    e("    s_nop 0")
    e(f"    v_cvt_pk_bf16_f32 v{var}, v{var}, v{var}")
    e(f"    v_and_b32 v{var}, 0xffff0000, v{var}")
    e(f"    v_rcp_f32 v{var}, v{var}")
    e("    s_nop 0")
    W = (X + 1) // 2 * 2
    for i in range(L):
        sc = W + 4 * (i % 2); sh = sc + 2
        e(f"    v_mul_f32 v{sc}, s{GF+i}, v{var}")
        e(f"    v_fma_f32 v{sh}, -v{ee}, v{sc}, s{BF+i}")
        for j in range(4):
            d = D + 8 * i + 2 * j
            e(f"    v_pk_fma_f32 v[{d}:{d+1}], v[{d}:{d+1}], v[{sc}:{sc+1}], v[{sh}:{sh+1}] op_sel_hi:[1,0,0]")
        for j in range(4):
            d = D + 8 * i + 2 * j
            e(f"    v_cvt_pk_bf16_f32 v{RAW+4*i+j}, v{d}, v{d+1}")
        ar, off = addr(i)
        if not nostore:
            e(f"    global_store_dwordx4 {ar}, v[{RAW+4*i}:{RAW+4*i+3}], s[10:11] offset:{off} {stflags}")
    vg = W + 8
    if stamp:
        e("    s_waitcnt vmcnt(0)")
        e("    s_memrealtime s[86:87]")
        e("    v_readfirstlane_b32 s91, v0")
        e(f"    s_mul_i32 s90, s90, {P*32}")
        e("    s_lshr_b32 s91, s91, 1")
        e("    s_add_u32 s90, s90, s91")
        e("    v_mov_b32 v1, s90")
        e("    s_waitcnt lgkmcnt(0)")
        e("    s_getreg_b32 s83, hwreg(HW_REG_HW_ID)")
        e("    s_getreg_b32 s85, hwreg(HW_REG_XCC_ID)")
        for k in range(8):
            e(f"    v_mov_b32 v{RAW+k}, s{80+k}")
        e("    s_mov_b64 exec, 1")
        e(f"    global_store_dwordx4 v1, v[{RAW}:{RAW+3}], s[88:89]")
        e(f"    global_store_dwordx4 v1, v[{RAW+4}:{RAW+7}], s[88:89] offset:16")
    e("L_end:")
    e("    s_endpgm")
    acc = (vg + 3) // 4 * 4
    lds = 512 * P
    return HEADER.format(grid=1024, block=64 * P, lds=lds) + "\n".join(o) + "\n" + FOOTER.format(vgpr=vg, sgpr=96 if stamp else 80, acc=acc)

if __name__ == "__main__":
    ap = argparse.ArgumentParser()
    ap.add_argument("-P", type=int, default=4)
    ap.add_argument("--ld", default="nt")
    ap.add_argument("--st", default="nt")
    ap.add_argument("--stamp", action="store_true")
    ap.add_argument("--noload", action="store_true")
    ap.add_argument("--nostore", action="store_true")
    ap.add_argument("--gb", default="first")
    ap.add_argument("-o", default="/dev/stdout")
    a = ap.parse_args()
    open(a.o, "w").write(gen(a.P, a.ld, a.st, a.stamp, a.noload, a.nostore, a.gb))
```

```python
import sys, re
src = open(sys.argv[1]).read()
what = sys.argv[3]
m = re.search(r"; @launch grid=\((\d+),1,1\) block=\((\d+),1,1\) lds=(\d+)\n", src)
g, b, l = m.groups()
nw = int(g) * int(b) // 64
src = src.replace(m.group(0), f"; @launch kernel=standalone__groupnorm__sampling_kernel grid=({g},1,1) block=({b},1,1) lds={l}\n; @launch kernel=reduce_kernel grid=(1,1,1) block=(64,1,1) lds=0\n")
src = src.replace("; Override launch geometry by editing the next line (default: block=256,\n; grid=ceil(out_elems/256), lds=0). Harness parses it; keep it on one line.\n", "")
body = []
e = body.append
e(".text\n.globl reduce_kernel\n.p2align 8\n.type reduce_kernel,@function\nreduce_kernel:")
e("    s_load_dwordx4 s[4:7], s[0:1], 32")
e("    s_cmp_lg_u32 s2, 0")
e("    s_cbranch_scc1 R_end")
e("    v_lshlrev_b32 v1, 5, v0")
for k in range(8): e(f"    v_mov_b32 v{16+k}, 0")
e(f"    s_mov_b32 s8, {nw//64}")
e("    s_waitcnt lgkmcnt(0)")
e("R_loop:")
e("    global_load_dwordx4 v[4:7], v1, s[6:7]")
e("    global_load_dwordx4 v[8:11], v1, s[6:7] offset:16")
e("    s_waitcnt vmcnt(0)")
for k, r in enumerate((4, 6, 8, 10)):
    e(f"    v_not_b32 v12, v{r}")
    e(f"    v_max_u32 v{16+2*k}, v{16+2*k}, v12")
    e(f"    v_max_u32 v{17+2*k}, v{17+2*k}, v{r}")
e("    v_add_u32 v1, 2048, v1")
e("    s_sub_u32 s8, s8, 1")
e("    s_cmp_lg_u32 s8, 0")
e("    s_cbranch_scc1 R_loop")
sel = {"zero": 23, "cal": 23, "startmax": 17, "firstmin": 18, "firstmax": 19, "lastmax": 21, "endmin": 22, "endmax": 23}[what]
e("    s_mov_b32 s10, 0")
e("    s_mov_b32 s11, 0")
for ln in range(64):
    e(f"    v_readlane_b32 s12, v16, {ln}")
    e(f"    v_readlane_b32 s13, v{sel}, {ln}")
    e("    s_max_u32 s10, s10, s12")
    e("    s_max_u32 s11, s11, s13")
if sel % 2 == 0: e("    s_not_b32 s11, s11")
e("    s_not_b32 s10, s10")
e("    s_sub_u32 s10, s11, s10")
e("    v_mov_b32 v2, 0")
e("    v_mov_b32 v3, s10")
e("    global_store_dword v2, v3, s[4:5]")
if what == "zero": e("    s_mov_b32 s10, 0")
if what == "cal": e("    s_mov_b32 s10, 500")
e("    s_min_u32 s10, s10, 4000")
e("    s_mul_i32 s10, s10, 50")
e("    s_add_u32 s10, s10, 1")
e("R_l2:")
e("    s_sub_u32 s10, s10, 1")
e("    s_cmp_lg_u32 s10, 0")
e("    s_cbranch_scc1 R_l2")
e("    s_waitcnt vmcnt(0)")
e("R_end:")
e("    s_endpgm")
foot = """.amdhsa_kernel reduce_kernel
  .amdhsa_next_free_vgpr 24
  .amdhsa_next_free_sgpr 16
  .amdhsa_accum_offset 24
  .amdhsa_group_segment_fixed_size 0
  .amdhsa_kernarg_size 48
  .amdhsa_user_sgpr_count 2
  .amdhsa_user_sgpr_kernarg_segment_ptr 1
  .amdhsa_system_sgpr_workgroup_id_x 1
  .amdhsa_float_denorm_mode_32 3
.end_amdhsa_kernel
"""
src = src.replace('.section .rodata,"a"', "\n".join(body) + '\n.section .rodata,"a"')
src = src.rstrip("\n") + "\n.p2align 6\n" + foot
open(sys.argv[2], "w").write(src)
```
